```python
import torch

def _softmax(x, axis=-1):
    return torch.softmax(x, dim=axis)
def _gelu(x):
    return torch.nn.functional.gelu(x, approximate="tanh")
def _silu(x):
    return torch.nn.functional.silu(x)
def _sigmoid(x):
    return torch.sigmoid(x)
def _layernorm(x, axis=-1, eps=1e-5):
    m = x.mean(dim=axis, keepdim=True)
    v = x.var(dim=axis, keepdim=True, unbiased=False)
    return (x - m) / torch.sqrt(v + eps)
def _scatter_add(tgt, idx, src, axis=0):
    return tgt.clone().index_add_(axis, idx, src)
def _segment_sum(src, seg, n):
    out = torch.zeros((n,) + src.shape[1:], dtype=src.dtype)
    return out.index_add_(0, seg, src)
def _pad(x, pw):
    flat = tuple(v for pair in reversed(pw) for v in pair)
    return torch.nn.functional.pad(x, flat)

kernel_name = 'gated_mix__softmax_full_mha__dense_activation_relu__prompt'

def setup_inputs():

    _w = (lambda a: (lambda t: t.to(torch.bfloat16) if t.is_floating_point() else t)(torch.as_tensor(a)))
    def _A_setup():
        B, S, D = 1, 2048, 512
        return {
            "x": _w((lambda *s: torch.randn(*s, dtype=torch.bfloat16) * 0.05)(B, S, D)),
            "wqkv": _w((lambda *s: torch.randn(*s, dtype=torch.bfloat16) * 0.8)(D, 3 * D)),
            "wo": _w((lambda *s: torch.randn(*s, dtype=torch.bfloat16) * 0.1)(D, D)),
        }
    _A_in = _A_setup()

    def _B_setup():
        B, S, D, Dff = 1, 2048, 512, 1376
        return {
            "x": _w((lambda *s: torch.randn(*s, dtype=torch.bfloat16) * 0.05)(B, S, D)),
            "w1": _w((lambda *s: torch.randn(*s, dtype=torch.bfloat16) * 0.05)(D, Dff)),
            "w2": _w((lambda *s: torch.randn(*s, dtype=torch.bfloat16) * 0.05)(Dff, D)),
        }
    _B_in = _B_setup()

    return {
        "A_x": _A_in["x"],
        "A_wqkv": _A_in["wqkv"],
        "A_wo": _A_in["wo"],
        "B_x": _B_in["x"],
        "B_w1": _B_in["w1"],
        "B_w2": _B_in["w2"],
        "gate_w": _w((lambda *s: torch.randn(*s, dtype=torch.bfloat16) * 0.05)(512) * 16.0),
    }

def reference(A_x, A_wqkv, A_wo, B_x, B_w1, B_w2, gate_w):
    def _A_ref(x, wqkv, wo):
        B, S, D = x.shape
        H = 32; Dh = D // H
        qkv = (lambda x, *d: x.permute(*d))((x @ wqkv).reshape(B, S, 3, H, Dh), 2, 0, 3, 1, 4)
        q, k, v = qkv[0], qkv[1], qkv[2]
        scale = Dh ** -0.5
        scores = torch.einsum("bhqd,bhkd->bhqk", q, k) * scale
        p = _softmax(scores, axis=-1)
        o = torch.einsum("bhqk,bhkd->bhqd", p, v)
        return (lambda x, *d: x.permute(*d))(o, 0, 2, 1, 3).reshape(B, S, D) @ wo

    def _B_ref(x, w1, w2):
        h = torch.einsum("bsd,df->bsf", x, w1)
        zero = torch.zeros_like(h)
        h = torch.maximum(h, zero)
        return torch.einsum("bsf,fd->bsd", h, w2)

    x = A_x
    g = _sigmoid((x * gate_w).sum(-1, keepdims=True))
    a = _A_ref(x, A_wqkv, A_wo)
    b = _B_ref(x, B_w1, B_w2)
    return g * a + (1 - g) * b
```

```python
import math
import sys

OUT = "gated_mix__softmax_full_mha__dense_activation_relu__prompt.s"

QF = 0
KF = 2 << 20
VF = 4 << 20
HF = 6 << 20
OF = 12 << 20
GF = 14 << 20
WS_SIZE = 16 << 20

C_SCALE = 0.25 * math.log2(math.e)

GPU_WAIT_T = 8.0


def f32bits(x):
    import struct
    return struct.unpack("<I", struct.pack("<f", x))[0]


class Asm:
    def __init__(self):
        self.l = []

    def __call__(self, s):
        self.l.append("    " + s)

    def label(self, s):
        self.l.append(s + ":")

    def raw(self, s):
        self.l.append(s)

    def text(self):
        return "\n".join(self.l) + "\n"


def vr(b, n):
    return f"v[{b}:{b + n - 1}]"


def sr(b, n):
    return f"s[{b}:{b + n - 1}]"


def make_srd(a, sbase, sptr, nbytes):
    a(f"s_mov_b32 s{sbase}, s{sptr}")
    a(f"s_and_b32 s{sbase + 1}, s{sptr + 1}, 0xffff")
    a(f"s_mov_b32 s{sbase + 2}, {nbytes}")
    a(f"s_mov_b32 s{sbase + 3}, 0x00020000")


def gen_k1(a):
    A_STRIDE = 144
    B_STRIDE = 448
    A_BYTES = 128 * A_STRIDE
    STAGE = A_BYTES + 64 * B_STRIDE

    ACC = 96
    FR = 56
    STG = 16

    a.raw(".p2align 8")
    a.raw(".type qkv_kernel,@function")
    a.label("qkv_kernel")
    a("s_cmp_ge_u32 s2, 256")
    a("s_cbranch_scc1 K1_END")
    a("s_load_dwordx2 s[26:27], s[0:1], 0")
    a("s_load_dwordx2 s[28:29], s[0:1], 8")
    a("s_load_dwordx2 s[30:31], s[0:1], 32")
    a("s_load_dwordx2 s[32:33], s[0:1], 72")
    a("s_and_b32 s3, s2, 15")
    a("s_lshr_b32 s4, s2, 4")
    a("v_lshrrev_b32 v14, 6, v0")
    a("v_and_b32 v1, 63, v0")
    a("v_readfirstlane_b32 s5, v14")
    a("s_nop 3")
    a("s_and_b32 s6, s5, 1")
    a("s_lshr_b32 s7, s5, 1")
    a("s_waitcnt lgkmcnt(0)")
    make_srd(a, 8, 26, 2048 * 1024)
    make_srd(a, 16, 32, WS_SIZE)
    a("s_cmp_lt_u32 s4, 8")
    a("s_cbranch_scc0 K1_W1")
    make_srd(a, 12, 28, 512 * 3072)
    a("s_movk_i32 s20, 3072")
    a("s_mul_i32 s22, s4, 384")
    a("s_branch K1_WDONE")
    a.label("K1_W1")
    make_srd(a, 12, 30, 512 * 2752)
    a("s_movk_i32 s20, 2752")
    a("s_sub_u32 s25, s4, 8")
    a("s_mul_i32 s22, s25, 384")
    a.label("K1_WDONE")
    a("s_lshl_b32 s23, s20, 6")
    a("s_mov_b32 s21, 0")
    a("v_lshrrev_b32 v14, 3, v0")
    a("v_and_b32 v15, 7, v0")
    a("s_lshl_b32 s25, s3, 7")
    a("v_add_u32 v2, s25, v14")
    a("v_lshlrev_b32 v2, 10, v2")
    a("v_lshl_add_u32 v2, v15, 4, v2")
    a("v_add_u32 v3, 0x8000, v2")
    a("v_add_u32 v4, 0x10000, v2")
    a("v_add_u32 v5, 0x18000, v2")
    a("v_mul_lo_u32 v6, v14, s20")
    a("v_lshl_add_u32 v6, v15, 4, v6")
    a("s_lshl_b32 s25, s20, 5")
    a("v_add_u32 v7, s25, v6")
    a(f"v_mul_u32_u24 v8, {A_STRIDE}, v14")
    a("v_lshl_add_u32 v8, v15, 4, v8")
    a(f"v_mul_u32_u24 v9, {B_STRIDE}, v14")
    a("v_lshl_add_u32 v9, v15, 4, v9")
    a(f"v_add_u32 v9, {A_BYTES}, v9")
    a("v_and_b32 v14, 31, v1")
    a("s_lshl_b32 s25, s6, 6")
    a("v_add_u32 v14, s25, v14")
    a(f"v_mul_u32_u24 v10, {A_STRIDE}, v14")
    a("v_lshrrev_b32 v15, 5, v1")
    a("v_lshl_add_u32 v10, v15, 4, v10")
    a(f"v_add_u32 v11, {STAGE}, v10")
    a("v_lshrrev_b32 v14, 5, v1")
    a("v_lshlrev_b32 v14, 3, v14")
    a("v_bfe_u32 v15, v1, 2, 2")
    a("v_add_u32 v14, v14, v15")
    a(f"v_mul_u32_u24 v12, {B_STRIDE}, v14")
    a("v_bfe_u32 v14, v1, 4, 1")
    a("v_lshlrev_b32 v14, 5, v14")
    a("v_and_b32 v15, 3, v1")
    a("v_lshl_add_u32 v14, v15, 3, v14")
    a("v_add_u32 v12, v12, v14")
    a("s_mul_i32 s25, s7, 192")
    a(f"s_add_u32 s25, s25, {A_BYTES}")
    a("v_add_u32 v12, s25, v12")
    a(f"v_add_u32 v13, {STAGE}, v12")
    for i in range(96):
        a(f"v_mov_b32 v{ACC + i}, 0")

    def issue_loads():
        for j in range(4):
            a(f"buffer_load_dwordx4 {vr(STG + 4 * j, 4)}, v{2 + j}, s[8:11], s21 offen")
        for j in range(6):
            a(f"buffer_load_dwordx4 {vr(STG + 16 + 4 * j, 4)}, v{6 + j // 3}, s[12:15], s22 offen offset:{(j % 3) * 128}")

    def write_lds(st):
        base = st * STAGE
        for j in range(4):
            a(f"ds_write_b128 v8, {vr(STG + 4 * j, 4)} offset:{base + j * 32 * A_STRIDE}")
        for j in range(6):
            a(f"ds_write_b128 v9, {vr(STG + 16 + 4 * j, 4)} offset:{base + (j // 3) * 32 * B_STRIDE + (j % 3) * 128}")

    def frag_reads(st, kk, fs):
        fb = FR + 20 * fs
        xa = 10 + st
        wa = 12 + st
        for i in range(2):
            a(f"ds_read_b128 {vr(fb + 4 * i, 4)}, v{xa} offset:{i * 32 * A_STRIDE + kk * 32}")
        for nb in range(3):
            for q in range(2):
                a(f"ds_read_b64_tr_b16 {vr(fb + 8 + 4 * nb + 2 * q, 2)}, v{wa} offset:{kk * 16 * B_STRIDE + q * 4 * B_STRIDE + nb * 64}")

    def mfmas(fs, pat):
        fb = FR + 20 * fs
        for i in range(2):
            for nb in range(3):
                acc = vr(ACC + (i * 3 + nb) * 16, 16)
                x = vr(fb + 4 * i, 4)
                w = vr(fb + 8 + 4 * nb, 4)
                if pat[nb] == "T":
                    a(f"v_mfma_f32_32x32x16_bf16 {acc}, {w}, {x}, {acc}")
                else:
                    a(f"v_mfma_f32_32x32x16_bf16 {acc}, {x}, {w}, {acc}")

    def chunk(st, pat, last):
        if not last:
            a("s_add_u32 s21, s21, 128")
            a("s_add_u32 s22, s22, s23")
            issue_loads()
        frag_reads(st, 0, 0)
        for kk in range(4):
            if kk < 3:
                frag_reads(st, kk + 1, (kk + 1) & 1)
                a("s_waitcnt lgkmcnt(8)")
            else:
                a("s_waitcnt lgkmcnt(0)")
            mfmas(kk & 1, pat)
        if not last:
            a("s_waitcnt vmcnt(0)")
            write_lds(st ^ 1)
            a("s_waitcnt lgkmcnt(0)")
            a("s_barrier")

    issue_loads()
    a("s_waitcnt vmcnt(0)")
    write_lds(0)
    a("s_waitcnt lgkmcnt(0)")
    a("s_barrier")
    a("s_and_b32 s25, s4, 7")
    a("s_mul_i32 s25, s25, 6")
    a("s_mul_i32 s34, s7, 3")
    a("s_add_u32 s25, s25, s34")
    a("s_cmp_ge_u32 s4, 8")
    a("s_cbranch_scc1 K1_TTT")
    a("s_cmp_ge_u32 s25, 33")
    a("s_cbranch_scc1 K1_NNN")
    a("s_cmp_eq_u32 s25, 30")
    a("s_cbranch_scc1 K1_TTN")

    TMP = 192

    def epilogue(pat, tag):
        a("s_nop 7")
        a("s_nop 7")
        a("v_lshlrev_b32 v14, 4, v1")
        for i in range(2):
            for nb in range(3):
                acc = ACC + (i * 3 + nb) * 16
                lbl = f"K1_E{tag}_{i}{nb}"
                a("s_lshl_b32 s35, s3, 2")
                a("s_lshl_b32 s36, s6, 1")
                a("s_add_u32 s35, s35, s36")
                a(f"s_add_u32 s35, s35, {i}")
                a(f"s_add_u32 s36, s25, {nb}")
                if pat[nb] == "T":
                    a("s_cmp_ge_u32 s4, 8")
                    a(f"s_cbranch_scc1 {lbl}_H")
                    a("s_and_b32 s37, s36, 15")
                    a("s_lshl_b32 s37, s37, 17")
                    a("s_lshl_b32 s38, s35, 10")
                    a("s_add_u32 s37, s37, s38")
                    a(f"s_mov_b32 s39, {f32bits(C_SCALE)}")
                    a("s_mov_b32 s40, 0xff800000")
                    a("s_mov_b32 s41, 65536")
                    a("s_cmp_lt_u32 s36, 16")
                    a(f"s_cbranch_scc1 {lbl}_GO")
                    a(f"s_add_u32 s37, s37, {KF}")
                    a("s_mov_b32 s39, 1.0")
                    a(f"s_branch {lbl}_GO")
                    a.label(f"{lbl}_H")
                    a("s_cmp_ge_u32 s36, 43")
                    a(f"s_cbranch_scc1 {lbl}_SKIP")
                    a("s_mul_i32 s37, s35, 86")
                    a("s_lshl_b32 s38, s36, 1")
                    a("s_add_u32 s37, s37, s38")
                    a("s_lshl_b32 s37, s37, 10")
                    a(f"s_add_u32 s37, s37, {HF}")
                    a("s_mov_b32 s39, 1.0")
                    a("s_mov_b32 s40, 0")
                    a("s_movk_i32 s41, 1024")
                    a.label(f"{lbl}_GO")
                    for g in range(2):
                        for r in range(8):
                            a(f"v_mul_f32 v{TMP + r}, s39, v{acc + 8 * g + r}")
                            a(f"v_max_f32 v{TMP + r}, s40, v{TMP + r}")
                        for r in range(4):
                            a(f"v_cvt_pk_bf16_f32 v{TMP + 8 + r}, v{TMP + 2 * r}, v{TMP + 2 * r + 1}")
                        if g == 1:
                            a("s_add_u32 s37, s37, s41")
                        a(f"buffer_store_dwordx4 {vr(TMP + 8, 4)}, v14, s[16:19], s37 offen")
                        a("s_nop 1")
                    a.label(f"{lbl}_SKIP")
                else:
                    a("s_sub_u32 s37, s36, 32")
                    a("s_lshl_b32 s37, s37, 17")
                    a("s_lshl_b32 s38, s35, 10")
                    a("s_add_u32 s37, s37, s38")
                    a(f"s_add_u32 s37, s37, {VF}")
                    a("v_bfe_u32 v15, v1, 4, 1")
                    a("v_lshlrev_b32 v15, 16, v15")
                    a("v_lshrrev_b32 v16, 5, v1")
                    a("v_lshl_add_u32 v15, v16, 8, v15")
                    a("v_and_b32 v16, 15, v1")
                    a("v_lshl_add_u32 v15, v16, 4, v15")
                    for g in range(2):
                        for r in range(4):
                            a(f"v_cvt_pk_bf16_f32 v{TMP + 8 + r}, v{acc + 8 * g + 2 * r}, v{acc + 8 * g + 2 * r + 1}")
                        a(f"buffer_store_dwordx4 {vr(TMP + 8, 4)}, v15, s[16:19], s37 offen offset:{512 * g}")
                        a("s_nop 1")
        a("s_branch K1_END")

    for pat in ("TTT", "TTN", "NNN"):
        a.label(f"K1_{pat}")
        for c in range(8):
            chunk(c & 1, pat, c == 7)
        epilogue(pat, pat)
    a.label("K1_END")
    a("s_endpgm")


def gen_k2(a):
    QR, KR, V0, V1 = 4, 8, 16, 20
    S, CN, O, P = 32, 48, 64, 80
    a.raw(".p2align 8")
    a.raw(".type attn_kernel,@function")
    a.label("attn_kernel")
    a("s_cmp_ge_u32 s2, 256")
    a("s_cbranch_scc1 K2_END")
    a("s_load_dwordx2 s[26:27], s[0:1], 0")
    a("s_load_dwordx2 s[28:29], s[0:1], 48")
    a("s_load_dwordx2 s[32:33], s[0:1], 72")
    a("s_and_b32 s3, s2, 31")
    a("s_lshr_b32 s4, s2, 5")
    a("v_lshrrev_b32 v2, 6, v0")
    a("v_and_b32 v1, 63, v0")
    a("v_readfirstlane_b32 s5, v2")
    a("s_waitcnt lgkmcnt(0)")
    make_srd(a, 8, 26, 2048 * 1024)
    make_srd(a, 12, 28, 1024)
    make_srd(a, 16, 32, WS_SIZE)
    a("v_lshlrev_b32 v2, 4, v0")
    a("s_lshl_b32 s6, s3, 16")
    a(f"s_add_u32 s7, s6, {KF}")
    a(f"s_add_u32 s20, s6, {VF}")
    for half, sbase in ((0, "s7"), (1, "s20")):
        for j in range(8):
            a(f"buffer_load_dwordx4 {vr(96 + 4 * j, 4)}, v2, s[16:19], {sbase} offen")
            if j < 7:
                a(f"s_add_u32 {sbase}, {sbase}, 8192")
        a("s_waitcnt vmcnt(0)")
        if half == 1:
            a("v_add_u32 v2, 0x10000, v2")
        for j in range(8):
            a(f"ds_write_b128 v2, {vr(96 + 4 * j, 4)} offset:{j * 8192}")
    a("s_lshl_b32 s21, s4, 3")
    a("s_add_u32 s21, s21, s5")
    a("s_lshl_b32 s22, s3, 6")
    a("s_add_u32 s22, s22, s21")
    a("s_lshl_b32 s22, s22, 10")
    a("v_lshlrev_b32 v3, 4, v1")
    a(f"buffer_load_dwordx4 {vr(QR, 4)}, v3, s[16:19], s22 offen")
    a("s_lshl_b32 s23, s4, 8")
    a("s_lshl_b32 s24, s3, 3")
    a("s_add_u32 s23, s23, s24")
    a("s_add_u32 s23, s23, s5")
    a("s_lshl_b32 s24, s23, 10")
    a("buffer_load_dwordx4 v[24:27], v3, s[8:11], s24 offen")
    a("buffer_load_dwordx4 v[28:31], v3, s[12:15], 0 offen")
    a("s_waitcnt vmcnt(0)")
    a("v_mov_b32 v12, 0")
    for j in range(4):
        a(f"v_lshlrev_b32 v13, 16, v{24 + j}")
        a(f"v_lshlrev_b32 v14, 16, v{28 + j}")
        a("v_mul_f32 v13, v13, v14")
        a(f"v_and_b32 v14, 0xffff0000, v{24 + j}")
        a(f"v_and_b32 v15, 0xffff0000, v{28 + j}")
        a("v_mul_f32 v14, v14, v15")
        a("v_cvt_pk_bf16_f32 v13, v13, v14")
        a("v_lshlrev_b32 v14, 16, v13")
        a("v_add_f32 v12, v12, v14")
        a("v_and_b32 v14, 0xffff0000, v13")
        a("v_add_f32 v12, v12, v14")
    for off in (0x041F, 0x081F, 0x101F, 0x201F, 0x401F):
        a(f"ds_swizzle_b32 v13, v12 offset:{off}")
        a("s_waitcnt lgkmcnt(0)")
        a("v_add_f32 v12, v12, v13")
    a("v_mov_b32 v13, v12")
    a("s_nop 1")
    a("v_permlane32_swap_b32 v12, v13")
    a("v_add_f32 v12, v12, v13")
    a("v_cvt_pk_bf16_f32 v12, v12, v12")
    a("v_lshlrev_b32 v12, 16, v12")
    a(f"v_mul_f32 v12, {f32bits(-math.log2(math.e))}, v12")
    a("v_exp_f32 v12, v12")
    a("s_nop 0")
    a("v_add_f32 v12, 1.0, v12")
    a("v_rcp_f32 v12, v12")
    a("s_nop 0")
    a("v_cvt_pk_bf16_f32 v12, v12, v12")
    a("v_lshlrev_b32 v12, 16, v12")
    a("s_lshl_b32 s24, s23, 2")
    a(f"s_add_u32 s24, s24, {GF}")
    a("v_cmp_eq_u32 vcc, 0, v1")
    a("s_and_saveexec_b64 s[30:31], vcc")
    a("v_mov_b32 v13, 0")
    a("buffer_store_dword v12, v13, s[16:19], s24 offen")
    a("s_mov_b64 exec, s[30:31]")
    a("v_and_b32 v2, 31, v1")
    a("v_cmp_eq_u32 vcc, 16, v2")
    a("v_mov_b32 v3, 0x3f803f80")
    a("s_nop 1")
    a("v_cndmask_b32 v2, 0, v3, vcc")
    for r in range(4):
        a(f"v_mov_b32 v{V0 + r}, v2")
        a(f"v_mov_b32 v{V1 + r}, v2")
    for r in range(16):
        a(f"v_mov_b32 v{O + r}, 0")
        a(f"v_mov_b32 v{CN + r}, 0")
    a("v_lshlrev_b32 v2, 4, v1")
    a("v_lshrrev_b32 v3, 5, v1")
    a("v_and_b32 v12, 15, v1")
    a("v_lshlrev_b32 v12, 4, v12")
    a("v_lshl_add_u32 v3, v3, 8, v12")
    a("v_add_u32 v3, 0x10000, v3")
    a("s_mov_b32 s34, 0xffff")
    a("s_mov_b32 s35, 0xffff")
    a(f"s_mov_b32 s36, {f32bits(GPU_WAIT_T)}")
    a("s_waitcnt lgkmcnt(0)")
    a("s_barrier")

    cnt = [0]

    def tile(off, force):
        n = cnt[0]
        cnt[0] += 1
        a(f"ds_read_b128 {vr(KR, 4)}, v2 offset:{off}")
        a("s_mov_b64 exec, s[34:35]")
        a(f"ds_read_b128 {vr(V0, 4)}, v3 offset:{off}")
        a(f"ds_read_b128 {vr(V1, 4)}, v3 offset:{off + 512}")
        a("s_mov_b64 exec, -1")
        a("s_waitcnt lgkmcnt(2)")
        a(f"v_mfma_f32_32x32x16_bf16 {vr(S, 16)}, {vr(KR, 4)}, {vr(QR, 4)}, {vr(CN, 16)}")
        a("s_nop 7")
        a("s_nop 3")
        a(f"v_max3_f32 v12, v{S}, v{S + 1}, v{S + 2}")
        for r in range(3, 15, 2):
            a(f"v_max3_f32 v12, v12, v{S + r}, v{S + r + 1}")
        a(f"v_max_f32 v12, v12, v{S + 15}")
        a("v_mov_b32 v13, v12")
        a("s_nop 1")
        a("v_permlane32_swap_b32 v12, v13")
        a("v_max_f32 v12, v12, v13")
        if not force:
            a("v_cmp_lt_f32 vcc, s36, v12")
            a("s_nop 1")
            a(f"s_cbranch_vccz K2_FAST{n}")
            a("v_max_f32 v12, 0, v12")
        a("v_sub_f32 v13, 0, v12")
        a("v_exp_f32 v13, v13")
        a(f"v_sub_f32 v14, v{CN}, v12")
        for r in range(16):
            a(f"v_mul_f32 v{O + r}, v{O + r}, v13")
        for r in range(16):
            a(f"v_mov_b32 v{CN + r}, v14")
        for r in range(16):
            a(f"v_sub_f32 v{S + r}, v{S + r}, v12")
        if not force:
            a.label(f"K2_FAST{n}")
        for r in range(16):
            a(f"v_exp_f32 v{S + r}, v{S + r}")
        a("s_nop 0")
        for r in range(8):
            a(f"v_cvt_pk_bf16_f32 v{P + r}, v{S + 2 * r}, v{S + 2 * r + 1}")
        a("s_waitcnt lgkmcnt(0)")
        a("s_nop 0")
        a(f"v_mfma_f32_32x32x16_bf16 {vr(O, 16)}, {vr(V0, 4)}, {vr(P, 4)}, {vr(O, 16)}")
        a(f"v_mfma_f32_32x32x16_bf16 {vr(O, 16)}, {vr(V1, 4)}, {vr(P + 4, 4)}, {vr(O, 16)}")

    tile(0, True)
    a("s_mov_b32 s37, 0")
    a.label("K2_LOOP")
    for u in range(3):
        tile(1024 * (1 + u), False)
    a("v_add_u32 v2, 3072, v2")
    a("v_add_u32 v3, 3072, v3")
    a("s_add_u32 s37, s37, 1")
    a("s_cmp_lt_u32 s37, 21")
    a("s_cbranch_scc1 K2_LOOP")
    a("s_nop 7")
    a("s_nop 7")
    a(f"v_mov_b32 v12, v{O + 8}")
    a(f"v_mov_b32 v13, v{O + 8}")
    a("s_nop 1")
    a("v_permlane32_swap_b32 v12, v13")
    a("v_rcp_f32 v12, v12")
    a("s_nop 0")
    for r in range(8):
        a(f"v_mul_f32 v{S + r}, v{O + r}, v12")
    for r in range(4):
        a(f"v_cvt_pk_bf16_f32 v{P + r}, v{S + 2 * r}, v{S + 2 * r + 1}")
    a("s_lshl_b32 s22, s21, 5")
    a("s_add_u32 s22, s22, s3")
    a("s_lshl_b32 s22, s22, 10")
    a(f"s_add_u32 s22, s22, {OF}")
    a("v_lshlrev_b32 v3, 4, v1")
    a(f"buffer_store_dwordx4 {vr(P, 4)}, v3, s[16:19], s22 offen")
    a.label("K2_END")
    a("s_endpgm")


def gen_k3(a):
    RS = 192
    STAGE = 128 * RS
    ACA, ACB = 64, 80
    AF = 16
    WST = 48
    WF = 96
    a.raw(".p2align 8")
    a.raw(".type final_kernel,@function")
    a.label("final_kernel")
    a("s_cmp_ge_u32 s2, 256")
    a("s_cbranch_scc1 K3_END")
    a("s_load_dwordx2 s[26:27], s[0:1], 16")
    a("s_load_dwordx2 s[28:29], s[0:1], 40")
    a("s_load_dwordx2 s[30:31], s[0:1], 56")
    a("s_load_dwordx2 s[32:33], s[0:1], 72")
    a("s_lshr_b32 s3, s2, 3")
    a("s_and_b32 s4, s2, 7")
    a("v_lshrrev_b32 v2, 6, v0")
    a("v_and_b32 v1, 63, v0")
    a("v_readfirstlane_b32 s5, v2")
    a("s_nop 3")
    a("s_and_b32 s6, s5, 1")
    a("s_lshr_b32 s7, s5, 1")
    a("s_waitcnt lgkmcnt(0)")
    make_srd(a, 8, 26, 512 * 1024)
    make_srd(a, 12, 28, 1376 * 1024)
    make_srd(a, 16, 32, WS_SIZE)
    make_srd(a, 20, 30, 2048 * 1024)
    a("s_lshl_b32 s24, s3, 1")
    a("s_add_u32 s24, s24, s6")
    a("s_lshl_b32 s25, s4, 1")
    a("s_add_u32 s25, s25, s7")
    a("v_lshrrev_b32 v2, 3, v0")
    a("v_and_b32 v3, 7, v0")
    a("v_lshlrev_b32 v4, 10, v2")
    a("v_lshl_add_u32 v4, v3, 4, v4")
    a("s_lshl_b32 s34, s4, 7")
    a("v_add_u32 v4, s34, v4")
    a("v_add_u32 v5, 0x8000, v4")
    a("v_add_u32 v6, 0x10000, v4")
    a("v_add_u32 v7, 0x18000, v4")
    a(f"v_mul_u32_u24 v8, {RS}, v2")
    a("v_lshl_add_u32 v8, v3, 4, v8")
    a("v_lshrrev_b32 v2, 5, v1")
    a("v_lshlrev_b32 v2, 2, v2")
    a("v_bfe_u32 v3, v1, 2, 2")
    a("v_add_u32 v2, v2, v3")
    a(f"v_mul_u32_u24 v9, {RS}, v2")
    a("v_bfe_u32 v2, v1, 4, 1")
    a("v_lshlrev_b32 v2, 5, v2")
    a("v_and_b32 v3, 3, v1")
    a("v_lshl_add_u32 v2, v3, 3, v2")
    a("v_add_u32 v9, v9, v2")
    a("s_lshl_b32 s34, s7, 6")
    a("v_add_u32 v9, s34, v9")
    a(f"v_add_u32 v10, {STAGE}, v9")
    a("v_lshlrev_b32 v11, 4, v1")
    for i in range(32):
        a(f"v_mov_b32 v{ACA + i}, 0")
    a("s_lshl_b32 s36, s24, 15")
    a(f"s_add_u32 s36, s36, {OF}")
    a("s_mul_i32 s37, s24, 86")
    a("s_lshl_b32 s37, s37, 10")
    a(f"s_add_u32 s37, s37, {HF}")

    chunks = [("o", c, 8) for c in range(4)] + [("h", c, 8) for c in range(10)] + [("h", 10, 6)]

    def issue(ch):
        kind, c, nk = ch
        srd = "s[8:11]" if kind == "o" else "s[12:15]"
        a(f"s_mov_b32 s38, {c * 128 * 1024}")
        for j in range(4):
            a(f"buffer_load_dwordx4 {vr(WST + 4 * j, 4)}, v{4 + j}, {srd}, s38 offen")
        sb = "s36" if kind == "o" else "s37"
        a(f"s_add_u32 s39, {sb}, {c * 8 * 1024}")
        a(f"s_add_u32 s40, s39, 4096")
        for k in range(nk):
            a(f"buffer_load_dwordx4 {vr(AF + 4 * k, 4)}, v11, s[16:19], s{39 + k // 4} offen offset:{(k % 4) * 1024}")

    def write(st):
        for j in range(4):
            a(f"ds_write_b128 v8, {vr(WST + 4 * j, 4)} offset:{st * STAGE + j * 32 * RS}")

    issue(chunks[0])
    a("s_waitcnt vmcnt(8)")
    write(0)
    a("s_waitcnt lgkmcnt(0)")
    a("s_barrier")
    for ci, ch in enumerate(chunks):
        kind, c, nk = ch
        st = ci & 1
        acc = vr(ACA if kind == "o" else ACB, 16)
        a("s_waitcnt vmcnt(0)")
        for k in range(nk):
            fs = k & 1
            for q in range(2):
                a(f"ds_read_b64_tr_b16 {vr(WF + 4 * fs + 2 * q, 2)}, v{9 + st} offset:{(16 * k + 8 * q) * RS}")
            a("s_waitcnt lgkmcnt(0)")
            a(f"v_mfma_f32_32x32x16_bf16 {acc}, {vr(WF + 4 * fs, 4)}, {vr(AF + 4 * k, 4)}, {acc}")
        if ci + 1 < len(chunks):
            issue(chunks[ci + 1])
            a("s_waitcnt vmcnt(%d)" % chunks[ci + 1][2])
            write(st ^ 1)
            a("s_waitcnt lgkmcnt(0)")
            a("s_barrier")
    a("s_lshl_b32 s38, s24, 7")
    a(f"s_add_u32 s38, s38, {GF}")
    a("v_and_b32 v2, 31, v1")
    a("v_lshlrev_b32 v3, 2, v2")
    a("buffer_load_dword v12, v3, s[16:19], s38 offen")
    a("s_nop 7")
    a("s_nop 7")
    a("s_waitcnt vmcnt(0)")
    a("v_sub_f32 v13, 1.0, v12")
    a("v_cvt_pk_bf16_f32 v13, v13, v13")
    a("v_lshlrev_b32 v13, 16, v13")
    a("s_lshl_b32 s38, s24, 5")
    a("v_add_u32 v2, s38, v2")
    a("v_lshlrev_b32 v2, 10, v2")
    a("v_lshrrev_b32 v3, 5, v1")
    a("v_lshl_add_u32 v2, v3, 3, v2")
    a("s_lshl_b32 s38, s25, 6")
    a("v_add_u32 v2, s38, v2")

    def rnd(dst, src):
        a(f"v_cvt_pk_bf16_f32 v{dst}, v{src}, v{src}")
        a(f"v_lshlrev_b32 v{dst}, 16, v{dst}")

    for q in range(4):
        for r in range(4):
            i = 4 * q + r
            rnd(14, ACA + i)
            a("v_mul_f32 v14, v12, v14")
            rnd(14, 14)
            rnd(15, ACB + i)
            a("v_mul_f32 v15, v13, v15")
            rnd(15, 15)
            a(f"v_add_f32 v{100 + r}, v14, v15")
        a("v_cvt_pk_bf16_f32 v104, v100, v101")
        a("v_cvt_pk_bf16_f32 v105, v102, v103")
        a(f"buffer_store_dwordx2 v[104:105], v2, s[20:23], 0 offen offset:{16 * q}")
        a("s_nop 1")
    a.label("K3_END")
    a("s_endpgm")


KD = """.amdhsa_kernel {name}
  .amdhsa_next_free_vgpr {vgpr}
  .amdhsa_next_free_sgpr 102
  .amdhsa_accum_offset {acc}
  .amdhsa_group_segment_fixed_size 0
  .amdhsa_kernarg_size 80
  .amdhsa_user_sgpr_count 2
  .amdhsa_user_sgpr_kernarg_segment_ptr 1
  .amdhsa_system_sgpr_workgroup_id_x 1
.end_amdhsa_kernel
"""


def main():
    a = Asm()
    hdr = open("gated_mix__softmax_full_mha__dense_activation_relu__prompt.s.ref").read().splitlines()
    for line in hdr:
        if line.startswith("; @launch"):
            break
        a.raw(line)
    a.raw("; @launch kernel=qkv_kernel grid=(256,1,1) block=(256,1,1) lds=94208")
    a.raw("; @launch kernel=attn_kernel grid=(256,1,1) block=(512,1,1) lds=131072")
    a.raw("; @launch kernel=final_kernel grid=(256,1,1) block=(256,1,1) lds=49152")
    a.raw('.amdgcn_target "amdgcn-amd-amdhsa--gfx950"')
    a.raw(".text")
    for k in ("qkv_kernel", "attn_kernel", "final_kernel"):
        a.raw(f".globl {k}")
    gen_k1(a)
    gen_k2(a)
    gen_k3(a)
    a.raw('.section .rodata,"a"')
    for k in ("qkv_kernel", "attn_kernel", "final_kernel"):
        a.raw(".p2align 6")
        a.raw(KD.format(name=k, vgpr=256, acc=256))
    open(OUT, "w").write(a.text())


if __name__ == "__main__":
    main()
```

```python
import math
import os
import sys
EXP = os.environ.get("EXP", "")

OUT = os.environ.get("OUTS", "gated_mix__softmax_full_mha__dense_activation_relu__prompt.s")

QF = 0
KF = 2 << 20
VF = 4 << 20
HF = 6 << 20
OF = 12 << 20
GF = 14 << 20
WS_SIZE = 16 << 20

C_SCALE = 0.25 * math.log2(math.e)

GPU_WAIT_T = 8.0


def f32bits(x):
    import struct
    return struct.unpack("<I", struct.pack("<f", x))[0]


class Asm:
    def __init__(self):
        self.l = []

    def __call__(self, s):
        self.l.append("    " + s)

    def label(self, s):
        self.l.append(s + ":")

    def raw(self, s):
        self.l.append(s)

    def text(self):
        return "\n".join(self.l) + "\n"


def vr(b, n):
    return f"v[{b}:{b + n - 1}]"


def sr(b, n):
    return f"s[{b}:{b + n - 1}]"


def make_srd(a, sbase, sptr, nbytes):
    a(f"s_mov_b32 s{sbase}, s{sptr}")
    a(f"s_and_b32 s{sbase + 1}, s{sptr + 1}, 0xffff")
    a(f"s_mov_b32 s{sbase + 2}, {nbytes}")
    a(f"s_mov_b32 s{sbase + 3}, 0x00020000")


def gen_k1(a):
    A_STRIDE = 144
    B_STRIDE = 448
    A_BYTES = 128 * A_STRIDE
    STAGE = A_BYTES + 64 * B_STRIDE

    ACC = 96
    FR = 56
    STG = 16

    a.raw(".p2align 8")
    a.raw(".type qkv_kernel,@function")
    a.label("qkv_kernel")
    a("s_cmp_ge_u32 s2, 256")
    a("s_cbranch_scc1 K1_END")
    if "x_empty" in EXP:
        a("s_branch K1_END")
    a("s_load_dwordx2 s[26:27], s[0:1], 0")
    a("s_load_dwordx2 s[28:29], s[0:1], 8")
    a("s_load_dwordx2 s[30:31], s[0:1], 32")
    a("s_load_dwordx2 s[32:33], s[0:1], 72")
    a("s_and_b32 s3, s2, 15")
    a("s_lshr_b32 s4, s2, 4")
    a("v_lshrrev_b32 v14, 6, v0")
    a("v_and_b32 v1, 63, v0")
    a("v_readfirstlane_b32 s5, v14")
    a("s_nop 3")
    a("s_and_b32 s6, s5, 1")
    a("s_lshr_b32 s7, s5, 1")
    a("s_waitcnt lgkmcnt(0)")
    make_srd(a, 8, 26, 2048 * 1024)
    make_srd(a, 16, 32, WS_SIZE)
    a("s_cmp_lt_u32 s4, 8")
    a("s_cbranch_scc0 K1_W1")
    make_srd(a, 12, 28, 512 * 3072)
    a("s_movk_i32 s20, 3072")
    a("s_mul_i32 s22, s4, 384")
    a("s_branch K1_WDONE")
    a.label("K1_W1")
    make_srd(a, 12, 30, 512 * 2752)
    a("s_movk_i32 s20, 2752")
    a("s_sub_u32 s25, s4, 8")
    a("s_mul_i32 s22, s25, 384")
    a.label("K1_WDONE")
    a("s_lshl_b32 s23, s20, 6")
    a("s_mov_b32 s21, 0")
    a("v_lshrrev_b32 v14, 3, v0")
    a("v_and_b32 v15, 7, v0")
    a("s_lshl_b32 s25, s3, 7")
    a("v_add_u32 v2, s25, v14")
    a("v_lshlrev_b32 v2, 10, v2")
    a("v_lshl_add_u32 v2, v15, 4, v2")
    a("v_add_u32 v3, 0x8000, v2")
    a("v_add_u32 v4, 0x10000, v2")
    a("v_add_u32 v5, 0x18000, v2")
    a("v_mul_lo_u32 v6, v14, s20")
    a("v_lshl_add_u32 v6, v15, 4, v6")
    a("s_lshl_b32 s25, s20, 5")
    a("v_add_u32 v7, s25, v6")
    a(f"v_mul_u32_u24 v8, {A_STRIDE}, v14")
    a("v_lshl_add_u32 v8, v15, 4, v8")
    a(f"v_mul_u32_u24 v9, {B_STRIDE}, v14")
    a("v_lshl_add_u32 v9, v15, 4, v9")
    a(f"v_add_u32 v9, {A_BYTES}, v9")
    a("v_and_b32 v14, 31, v1")
    a("s_lshl_b32 s25, s6, 6")
    a("v_add_u32 v14, s25, v14")
    a(f"v_mul_u32_u24 v10, {A_STRIDE}, v14")
    a("v_lshrrev_b32 v15, 5, v1")
    a("v_lshl_add_u32 v10, v15, 4, v10")
    a(f"v_add_u32 v11, {STAGE}, v10")
    a("v_lshrrev_b32 v14, 5, v1")
    a("v_lshlrev_b32 v14, 3, v14")
    a("v_bfe_u32 v15, v1, 2, 2")
    a("v_add_u32 v14, v14, v15")
    a(f"v_mul_u32_u24 v12, {B_STRIDE}, v14")
    a("v_bfe_u32 v14, v1, 4, 1")
    a("v_lshlrev_b32 v14, 5, v14")
    a("v_and_b32 v15, 3, v1")
    a("v_lshl_add_u32 v14, v15, 3, v14")
    a("v_add_u32 v12, v12, v14")
    a("s_mul_i32 s25, s7, 192")
    a(f"s_add_u32 s25, s25, {A_BYTES}")
    a("v_add_u32 v12, s25, v12")
    a(f"v_add_u32 v13, {STAGE}, v12")
    for i in range(96):
        a(f"v_mov_b32 v{ACC + i}, 0")

    def issue_loads():
        for j in range(4):
            a(f"buffer_load_dwordx4 {vr(STG + 4 * j, 4)}, v{2 + j}, s[8:11], s21 offen")
        for j in range(6):
            a(f"buffer_load_dwordx4 {vr(STG + 16 + 4 * j, 4)}, v{6 + j // 3}, s[12:15], s22 offen offset:{(j % 3) * 128}")

    def write_lds(st):
        base = st * STAGE
        for j in range(4):
            a(f"ds_write_b128 v8, {vr(STG + 4 * j, 4)} offset:{base + j * 32 * A_STRIDE}")
        for j in range(6):
            a(f"ds_write_b128 v9, {vr(STG + 16 + 4 * j, 4)} offset:{base + (j // 3) * 32 * B_STRIDE + (j % 3) * 128}")

    def frag_reads(st, kk, fs):
        fb = FR + 20 * fs
        xa = 10 + st
        wa = 12 + st
        for i in range(2):
            a(f"ds_read_b128 {vr(fb + 4 * i, 4)}, v{xa} offset:{i * 32 * A_STRIDE + kk * 32}")
        for nb in range(3):
            for q in range(2):
                a(f"ds_read_b64_tr_b16 {vr(fb + 8 + 4 * nb + 2 * q, 2)}, v{wa} offset:{kk * 16 * B_STRIDE + q * 4 * B_STRIDE + nb * 64}")

    def mfmas(fs, pat):
        fb = FR + 20 * fs
        for i in range(2):
            for nb in range(3):
                acc = vr(ACC + (i * 3 + nb) * 16, 16)
                x = vr(fb + 4 * i, 4)
                w = vr(fb + 8 + 4 * nb, 4)
                if pat[nb] == "T":
                    a(f"v_mfma_f32_32x32x16_bf16 {acc}, {w}, {x}, {acc}")
                else:
                    a(f"v_mfma_f32_32x32x16_bf16 {acc}, {x}, {w}, {acc}")

    def chunk(st, pat, last):
        if not last:
            a("s_add_u32 s21, s21, 128")
            a("s_add_u32 s22, s22, s23")
            if "noload" not in EXP:
                issue_loads()
        frag_reads(st, 0, 0)
        for kk in range(4):
            if kk < 3:
                frag_reads(st, kk + 1, (kk + 1) & 1)
                a("s_waitcnt lgkmcnt(8)")
            else:
                a("s_waitcnt lgkmcnt(0)")
            if "nomfma" not in EXP:
                mfmas(kk & 1, pat)
        if not last:
            a("s_waitcnt vmcnt(0)")
            write_lds(st ^ 1)
            a("s_waitcnt lgkmcnt(0)")
            a("s_barrier")

    issue_loads()
    a("s_waitcnt vmcnt(0)")
    write_lds(0)
    a("s_waitcnt lgkmcnt(0)")
    a("s_barrier")
    if "x_pro" in EXP:
        a("s_branch K1_END")
    a("s_and_b32 s25, s4, 7")
    a("s_mul_i32 s25, s25, 6")
    a("s_mul_i32 s34, s7, 3")
    a("s_add_u32 s25, s25, s34")
    a("s_cmp_ge_u32 s4, 8")
    a("s_cbranch_scc1 K1_TTT")
    a("s_cmp_ge_u32 s25, 33")
    a("s_cbranch_scc1 K1_NNN")
    a("s_cmp_eq_u32 s25, 30")
    a("s_cbranch_scc1 K1_TTN")

    TMP = 192

    def epilogue(pat, tag):
        if "x_epi" in EXP:
            a("s_branch K1_END")
        a("s_nop 7")
        a("s_nop 7")
        a("v_lshlrev_b32 v14, 4, v1")
        for i in range(2):
            for nb in range(3):
                acc = ACC + (i * 3 + nb) * 16
                lbl = f"K1_E{tag}_{i}{nb}"
                a("s_lshl_b32 s35, s3, 2")
                a("s_lshl_b32 s36, s6, 1")
                a("s_add_u32 s35, s35, s36")
                a(f"s_add_u32 s35, s35, {i}")
                a(f"s_add_u32 s36, s25, {nb}")
                if pat[nb] == "T":
                    a("s_cmp_ge_u32 s4, 8")
                    a(f"s_cbranch_scc1 {lbl}_H")
                    a("s_and_b32 s37, s36, 15")
                    a("s_lshl_b32 s37, s37, 17")
                    a("s_lshl_b32 s38, s35, 10")
                    a("s_add_u32 s37, s37, s38")
                    a(f"s_mov_b32 s39, {f32bits(C_SCALE)}")
                    a("s_mov_b32 s40, 0xff800000")
                    a("s_mov_b32 s41, 65536")
                    a("s_cmp_lt_u32 s36, 16")
                    a(f"s_cbranch_scc1 {lbl}_GO")
                    a(f"s_add_u32 s37, s37, {KF}")
                    a("s_mov_b32 s39, 1.0")
                    a(f"s_branch {lbl}_GO")
                    a.label(f"{lbl}_H")
                    a("s_cmp_ge_u32 s36, 43")
                    a(f"s_cbranch_scc1 {lbl}_SKIP")
                    a("s_mul_i32 s37, s35, 86")
                    a("s_lshl_b32 s38, s36, 1")
                    a("s_add_u32 s37, s37, s38")
                    a("s_lshl_b32 s37, s37, 10")
                    a(f"s_add_u32 s37, s37, {HF}")
                    a("s_mov_b32 s39, 1.0")
                    a("s_mov_b32 s40, 0")
                    a("s_movk_i32 s41, 1024")
                    a.label(f"{lbl}_GO")
                    for g in range(2):
                        for r in range(8):
                            a(f"v_mul_f32 v{TMP + r}, s39, v{acc + 8 * g + r}")
                            a(f"v_max_f32 v{TMP + r}, s40, v{TMP + r}")
                        for r in range(4):
                            a(f"v_cvt_pk_bf16_f32 v{TMP + 8 + r}, v{TMP + 2 * r}, v{TMP + 2 * r + 1}")
                        if g == 1:
                            a("s_add_u32 s37, s37, s41")
                        a(f"buffer_store_dwordx4 {vr(TMP + 8, 4)}, v14, s[16:19], s37 offen")
                        a("s_nop 1")
                    a.label(f"{lbl}_SKIP")
                else:
                    a("s_sub_u32 s37, s36, 32")
                    a("s_lshl_b32 s37, s37, 17")
                    a("s_lshl_b32 s38, s35, 10")
                    a("s_add_u32 s37, s37, s38")
                    a(f"s_add_u32 s37, s37, {VF}")
                    a("v_bfe_u32 v15, v1, 4, 1")
                    a("v_lshlrev_b32 v15, 16, v15")
                    a("v_lshrrev_b32 v16, 5, v1")
                    a("v_lshl_add_u32 v15, v16, 8, v15")
                    a("v_and_b32 v16, 15, v1")
                    a("v_lshl_add_u32 v15, v16, 4, v15")
                    for g in range(2):
                        for r in range(4):
                            a(f"v_cvt_pk_bf16_f32 v{TMP + 8 + r}, v{acc + 8 * g + 2 * r}, v{acc + 8 * g + 2 * r + 1}")
                        a(f"buffer_store_dwordx4 {vr(TMP + 8, 4)}, v15, s[16:19], s37 offen offset:{512 * g}")
                        a("s_nop 1")
        a("s_branch K1_END")

    for pat in ("TTT", "TTN", "NNN"):
        a.label(f"K1_{pat}")
        a("s_mov_b32 s24, 0")
        a.label(f"K1_L{pat}")
        chunk(0, pat, False)
        chunk(1, pat, False)
        a("s_add_u32 s24, s24, 1")
        a("s_cmp_lt_u32 s24, 4")
        a(f"s_cbranch_scc1 K1_L{pat}")
        epilogue(pat, pat)
    a.label("K1_END")
    a("s_endpgm")


def gen_k2(a):
    QR = 4
    KB = [8, 12]
    VB = [16, 24]
    SB = [32, 48]
    CN, O, P = 64, 80, 96
    T0, T1, T2 = 104, 105, 106
    a.raw(".p2align 8")
    a.raw(".type attn_kernel,@function")
    a.label("attn_kernel")
    a("s_cmp_ge_u32 s2, 256")
    a("s_cbranch_scc1 K2_END")
    a("s_load_dwordx2 s[26:27], s[0:1], 0")
    a("s_load_dwordx2 s[28:29], s[0:1], 48")
    a("s_load_dwordx2 s[32:33], s[0:1], 72")
    a("s_and_b32 s3, s2, 31")
    a("s_lshr_b32 s4, s2, 5")
    a("v_lshrrev_b32 v2, 6, v0")
    a("v_and_b32 v1, 63, v0")
    a("v_readfirstlane_b32 s5, v2")
    a("v_lshlrev_b32 v3, 4, v1")
    a("s_waitcnt lgkmcnt(0)")
    make_srd(a, 8, 26, 2048 * 1024)
    make_srd(a, 12, 28, 1024)
    make_srd(a, 16, 32, WS_SIZE)
    a("s_lshl_b32 s21, s4, 3")
    a("s_add_u32 s21, s21, s5")
    a("s_lshl_b32 s22, s3, 6")
    a("s_add_u32 s22, s22, s21")
    a("s_lshl_b32 s22, s22, 10")
    a(f"buffer_load_dwordx4 {vr(QR, 4)}, v3, s[16:19], s22 offen")
    a("s_lshl_b32 s6, s3, 16")
    a("s_lshl_b32 s7, s5, 10")
    a(f"s_add_u32 s20, s6, {KF}")
    a("s_add_u32 s20, s20, s7")
    a(f"s_add_u32 s23, s6, {VF}")
    a("s_add_u32 s23, s23, s7")
    a("s_add_u32 s24, s7, 0x10000")
    for c in range(8):
        a("s_mov_b32 m0, s7")
        a("s_nop 0")
        a(f"buffer_load_dwordx4 v3, s[16:19], s20 offen lds")
        a("s_mov_b32 m0, s24")
        a("s_nop 0")
        a(f"buffer_load_dwordx4 v3, s[16:19], s23 offen lds")
        if c < 7:
            a("s_add_u32 s7, s7, 8192")
            a("s_add_u32 s24, s24, 8192")
            a("s_add_u32 s20, s20, 8192")
            a("s_add_u32 s23, s23, 8192")
    a("s_lshl_b32 s23, s4, 8")
    a("s_lshl_b32 s24, s3, 3")
    a("s_add_u32 s23, s23, s24")
    a("s_add_u32 s23, s23, s5")
    a("s_lshl_b32 s24, s23, 10")
    a("buffer_load_dwordx4 v[24:27], v3, s[8:11], s24 offen")
    a("buffer_load_dwordx4 v[28:31], v3, s[12:15], 0 offen")
    a("v_and_b32 v2, 31, v1")
    a("v_cmp_eq_u32 vcc, 16, v2")
    a("v_mov_b32 v104, 0x3f803f80")
    a("s_nop 1")
    a("v_cndmask_b32 v2, 0, v104, vcc")
    for b in range(2):
        for r in range(8):
            if b == 0 or True:
                pass
    for r in range(16):
        a(f"v_mov_b32 v{O + r}, 0")
        a(f"v_mov_b32 v{CN + r}, 0")
    a("v_mov_b32 v107, v2")
    a("s_waitcnt vmcnt(0)")
    a("v_mov_b32 v12, 0")
    for j in range(4):
        a(f"v_lshlrev_b32 v13, 16, v{24 + j}")
        a(f"v_lshlrev_b32 v14, 16, v{28 + j}")
        a("v_mul_f32 v13, v13, v14")
        a(f"v_and_b32 v14, 0xffff0000, v{24 + j}")
        a(f"v_and_b32 v15, 0xffff0000, v{28 + j}")
        a("v_mul_f32 v14, v14, v15")
        a("v_cvt_pk_bf16_f32 v13, v13, v14")
        a("v_lshlrev_b32 v14, 16, v13")
        a("v_add_f32 v12, v12, v14")
        a("v_and_b32 v14, 0xffff0000, v13")
        a("v_add_f32 v12, v12, v14")
    for off in (0x041F, 0x081F, 0x101F, 0x201F, 0x401F):
        a(f"ds_swizzle_b32 v13, v12 offset:{off}")
        a("s_waitcnt lgkmcnt(0)")
        a("v_add_f32 v12, v12, v13")
    a("v_mov_b32 v13, v12")
    a("s_nop 1")
    a("v_permlane32_swap_b32 v12, v13")
    a("v_add_f32 v12, v12, v13")
    a("v_cvt_pk_bf16_f32 v12, v12, v12")
    a("v_lshlrev_b32 v12, 16, v12")
    a(f"v_mul_f32 v12, {f32bits(-math.log2(math.e))}, v12")
    a("v_exp_f32 v12, v12")
    a("s_nop 0")
    a("v_add_f32 v12, 1.0, v12")
    a("v_rcp_f32 v12, v12")
    a("s_nop 0")
    a("v_cvt_pk_bf16_f32 v12, v12, v12")
    a("v_lshlrev_b32 v12, 16, v12")
    a("s_lshl_b32 s24, s23, 2")
    a(f"s_add_u32 s24, s24, {GF}")
    a("v_cmp_eq_u32 vcc, 0, v1")
    a("s_and_saveexec_b64 s[30:31], vcc")
    a("v_mov_b32 v13, 0")
    a("buffer_store_dword v12, v13, s[16:19], s24 offen")
    a("s_mov_b64 exec, s[30:31]")
    for b in range(2):
        for r in range(8):
            a(f"v_mov_b32 v{VB[b] + r}, v107")
    a("v_lshlrev_b32 v2, 4, v1")
    a("v_lshrrev_b32 v3, 5, v1")
    a("v_and_b32 v12, 15, v1")
    a("v_lshlrev_b32 v12, 4, v12")
    a("v_lshl_add_u32 v3, v3, 8, v12")
    a("v_add_u32 v3, 0x10000, v3")
    a("s_mov_b32 s34, 0xffff")
    a("s_mov_b32 s35, 0xffff")
    a(f"s_mov_b32 s36, {f32bits(GPU_WAIT_T)}")
    a("s_barrier")
    a(f"ds_read_b128 {vr(KB[0], 4)}, v2")
    a("s_mov_b64 exec, s[34:35]")
    a(f"ds_read_b128 {vr(VB[0], 4)}, v3")
    a(f"ds_read_b128 {vr(VB[0] + 4, 4)}, v3 offset:512")
    a("s_mov_b64 exec, -1")
    a(f"ds_read_b128 {vr(KB[1], 4)}, v2 offset:1024")
    a("s_waitcnt lgkmcnt(3)")
    a(f"v_mfma_f32_32x32x16_bf16 {vr(SB[0], 16)}, {vr(KB[0], 4)}, {vr(QR, 4)}, {vr(CN, 16)}")

    cnt = [0]

    def tile(cur, u, force):
        nxt = cur ^ 1
        n = cnt[0]
        cnt[0] += 1
        S = SB[cur]
        a("s_mov_b64 exec, s[34:35]")
        a(f"ds_read_b128 {vr(VB[nxt], 4)}, v3 offset:{1024 * (u + 1)}")
        a(f"ds_read_b128 {vr(VB[nxt] + 4, 4)}, v3 offset:{1024 * (u + 1) + 512}")
        a("s_mov_b64 exec, -1")
        a("s_waitcnt lgkmcnt(2)")
        a(f"v_mfma_f32_32x32x16_bf16 {vr(SB[nxt], 16)}, {vr(KB[nxt], 4)}, {vr(QR, 4)}, {vr(CN, 16)}")
        a(f"ds_read_b128 {vr(KB[cur], 4)}, v2 offset:{1024 * (u + 2)}")
        if force:
            a("s_nop 7")
            a("s_nop 3")
        if "k2nomax" in EXP:
            a(f"v_mov_b32 v{T0}, 0")
        else:
            a(f"v_max3_f32 v{T0}, v{S}, v{S + 1}, v{S + 2}")
            for r in range(3, 15, 2):
                a(f"v_max3_f32 v{T0}, v{T0}, v{S + r}, v{S + r + 1}")
            a(f"v_max_f32 v{T0}, v{T0}, v{S + 15}")
        a(f"v_mov_b32 v{T1}, v{T0}")
        a("s_nop 1")
        a(f"v_permlane32_swap_b32 v{T0}, v{T1}")
        a(f"v_max_f32 v{T0}, v{T0}, v{T1}")
        if not force:
            a(f"v_cmp_lt_f32 vcc, s36, v{T0}")
            a("s_nop 1")
            a(f"s_cbranch_vccz K2_FAST{n}")
            a(f"v_max_f32 v{T0}, 0, v{T0}")
            a("s_nop 15")
        a(f"v_sub_f32 v{T1}, 0, v{T0}")
        a(f"v_exp_f32 v{T1}, v{T1}")
        a(f"v_sub_f32 v{T2}, v{CN}, v{T0}")
        for r in range(16):
            a(f"v_mul_f32 v{O + r}, v{O + r}, v{T1}")
        for r in range(16):
            a(f"v_mov_b32 v{CN + r}, v{T2}")
        for r in range(16):
            a(f"v_sub_f32 v{S + r}, v{S + r}, v{T0}")
        for r in range(16):
            a(f"v_sub_f32 v{SB[nxt] + r}, v{SB[nxt] + r}, v{T0}")
        if not force:
            a.label(f"K2_FAST{n}")
        for r in range(16):
            if "k2noexp" not in EXP:
                a(f"v_exp_f32 v{S + r}, v{S + r}")
        a("s_nop 0")
        for r in range(8):
            a(f"v_cvt_pk_bf16_f32 v{P + r}, v{S + 2 * r}, v{S + 2 * r + 1}")
        a("s_nop 1")
        if "k2nopv" not in EXP:
            a(f"v_mfma_f32_32x32x16_bf16 {vr(O, 16)}, {vr(VB[cur], 4)}, {vr(P, 4)}, {vr(O, 16)}")
            a(f"v_mfma_f32_32x32x16_bf16 {vr(O, 16)}, {vr(VB[cur] + 4, 4)}, {vr(P + 4, 4)}, {vr(O, 16)}")

    tile(0, 0, True)
    a("s_mov_b32 s37, 0")
    a.label("K2_LOOP")
    tile(1, 1, False)
    tile(0, 2, False)
    a("v_add_u32 v2, 2048, v2")
    a("v_add_u32 v3, 2048, v3")
    a("s_add_u32 s37, s37, 1")
    a("s_cmp_lt_u32 s37, 31")
    a("s_cbranch_scc1 K2_LOOP")
    tile(1, 1, False)
    a("s_nop 7")
    a("s_nop 7")
    a(f"v_mov_b32 v12, v{O + 8}")
    a(f"v_mov_b32 v13, v{O + 8}")
    a("s_nop 1")
    a("v_permlane32_swap_b32 v12, v13")
    a("v_rcp_f32 v12, v12")
    a("s_nop 0")
    for r in range(8):
        a(f"v_mul_f32 v{SB[0] + r}, v{O + r}, v12")
    for r in range(4):
        a(f"v_cvt_pk_bf16_f32 v{P + r}, v{SB[0] + 2 * r}, v{SB[0] + 2 * r + 1}")
    a("s_lshl_b32 s22, s21, 5")
    a("s_add_u32 s22, s22, s3")
    a("s_lshl_b32 s22, s22, 10")
    a(f"s_add_u32 s22, s22, {OF}")
    a("v_lshlrev_b32 v3, 4, v1")
    a(f"buffer_store_dwordx4 {vr(P, 4)}, v3, s[16:19], s22 offen")
    a.label("K2_END")
    a("s_endpgm")


def gen_k3(a):
    RS = 192
    STAGE = 128 * RS
    ACA, ACB = 64, 80
    AF = 16
    WST = 48
    WF = 96
    a.raw(".p2align 8")
    a.raw(".type final_kernel,@function")
    a.label("final_kernel")
    a("s_cmp_ge_u32 s2, 256")
    a("s_cbranch_scc1 K3_END")
    a("s_load_dwordx2 s[26:27], s[0:1], 16")
    a("s_load_dwordx2 s[28:29], s[0:1], 40")
    a("s_load_dwordx2 s[30:31], s[0:1], 56")
    a("s_load_dwordx2 s[32:33], s[0:1], 72")
    a("s_and_b32 s3, s2, 31")
    a("s_lshr_b32 s4, s2, 5")
    a("v_lshrrev_b32 v2, 6, v0")
    a("v_and_b32 v1, 63, v0")
    a("v_readfirstlane_b32 s5, v2")
    a("s_nop 3")
    a("s_and_b32 s6, s5, 1")
    a("s_lshr_b32 s7, s5, 1")
    a("s_waitcnt lgkmcnt(0)")
    make_srd(a, 8, 26, 512 * 1024)
    make_srd(a, 12, 28, 1376 * 1024)
    make_srd(a, 16, 32, WS_SIZE)
    make_srd(a, 20, 30, 2048 * 1024)
    a("s_lshl_b32 s24, s3, 1")
    a("s_add_u32 s24, s24, s6")
    a("s_lshl_b32 s25, s4, 1")
    a("s_add_u32 s25, s25, s7")
    a("v_lshrrev_b32 v2, 3, v1")
    a("v_and_b32 v3, 7, v1")
    a("v_bfe_u32 v4, v1, 4, 1")
    a("v_lshlrev_b32 v4, 2, v4")
    a("v_xor_b32 v3, v3, v4")
    a("v_lshlrev_b32 v4, 10, v2")
    a("v_lshl_add_u32 v4, v3, 4, v4")
    a("s_lshl_b32 s34, s4, 7")
    a("v_add_u32 v4, s34, v4")
    a("v_lshlrev_b32 v11, 4, v1")
    a("v_lshrrev_b32 v2, 5, v1")
    a("v_lshlrev_b32 v2, 2, v2")
    a("v_bfe_u32 v3, v1, 2, 2")
    a("v_add_u32 v2, v2, v3")
    a("v_lshlrev_b32 v9, 7, v2")
    a("v_bfe_u32 v2, v1, 3, 1")
    a("v_xor_b32 v2, s7, v2")
    a("v_lshl_add_u32 v9, v2, 6, v9")
    a("v_bfe_u32 v2, v1, 4, 1")
    a("v_lshlrev_b32 v2, 5, v2")
    a("v_and_b32 v3, 3, v1")
    a("v_lshl_add_u32 v2, v3, 3, v2")
    a("v_add_u32 v9, v9, v2")
    a("v_add_u32 v10, 0x10000, v9")
    a("s_lshl_b32 s34, s6, 13")
    a("s_add_u32 s34, s34, 16384")
    a("v_add_u32 v12, s34, v11")
    a("v_add_u32 v13, 0x10000, v12")
    for i in range(32):
        a(f"v_mov_b32 v{ACA + i}, 0")
    a("s_lshl_b32 s40, s3, 1")
    a("s_add_u32 s40, s40, s7")
    a("s_lshl_b32 s36, s40, 15")
    a(f"s_add_u32 s36, s36, {OF}")
    a("s_mul_i32 s37, s40, 86")
    a("s_lshl_b32 s37, s37, 10")
    a(f"s_add_u32 s37, s37, {HF}")
    a("s_lshl_b32 s41, s6, 12")
    a("s_add_u32 s36, s36, s41")
    a("s_add_u32 s37, s37, s41")
    a("s_lshl_b32 s42, s7, 13")
    a("s_add_u32 s42, s42, s41")
    a("s_add_u32 s42, s42, 16384")
    a("s_lshl_b32 s43, s5, 12")
    a("s_lshl_b32 s44, s5, 15")

    chunks = [("o", c, 8) for c in range(4)] + [("h", c, 8) for c in range(10)] + [("h", 10, 6)]

    def dma(ci):
        kind, c, nk = chunks[ci]
        st = ci & 3
        srd = "s[8:11]" if kind == "o" else "s[12:15]"
        for i in range(4):
            a(f"s_add_u32 s38, s44, {c * 128 * 1024 + i * 8192}")
            a(f"s_add_u32 s39, s43, {st * 32768 + i * 1024}")
            a("s_mov_b32 m0, s39")
            a("s_nop 0")
            a(f"buffer_load_dwordx4 v4, {srd}, s38 offen lds")
        sb = "s36" if kind == "o" else "s37"
        n = 0
        for k in range(4):
            if nk == 6 and k >= 2:
                a("s_cmp_eq_u32 s6, 1")
                a(f"s_cbranch_scc1 K3_SK{k}")
            a(f"s_add_u32 s38, {sb}, {c * 8192 + k * 1024}")
            a(f"s_add_u32 s39, s42, {st * 32768 + k * 1024}")
            a("s_mov_b32 m0, s39")
            a("s_nop 0")
            a("buffer_load_dwordx4 v11, s[16:19], s38 offen lds")
            if nk == 6 and k >= 2:
                a.label(f"K3_SK{k}")

    for ci in range(3):
        dma(ci)
    for ci, ch in enumerate(chunks):
        kind, c, nk = ch
        st = ci & 3
        acc = vr(ACA if kind == "o" else ACB, 16)
        a("s_waitcnt vmcnt(%d)" % (16 if ci <= 11 else (14 if ci == 12 else 0)))
        a("s_barrier")
        if ci + 3 < len(chunks):
            dma(ci + 3)
        wa = 9 + st // 2
        aa = 12 + st // 2
        so = (st & 1) * 32768
        for k in range(nk):
            for q in range(2):
                a(f"ds_read_b64_tr_b16 {vr(WF + 4 * k + 2 * q, 2)}, v{wa} offset:{so + (16 * k + 8 * q) * 128}")
            a(f"ds_read_b128 {vr(AF + 4 * k, 4)}, v{aa} offset:{so + k * 1024}")
        for k in range(nk):
            a("s_waitcnt lgkmcnt(%d)" % min(15, 3 * (nk - 1 - k)))
            a(f"v_mfma_f32_32x32x16_bf16 {acc}, {vr(WF + 4 * k, 4)}, {vr(AF + 4 * k, 4)}, {acc}")
    a("s_lshl_b32 s38, s24, 7")
    a(f"s_add_u32 s38, s38, {GF}")
    a("v_and_b32 v2, 31, v1")
    a("v_lshlrev_b32 v3, 2, v2")
    a("buffer_load_dword v12, v3, s[16:19], s38 offen")
    a("s_nop 7")
    a("s_nop 7")
    a("s_waitcnt vmcnt(0)")
    a("v_sub_f32 v13, 1.0, v12")
    a("v_cvt_pk_bf16_f32 v13, v13, v13")
    a("v_lshlrev_b32 v13, 16, v13")
    a("s_lshl_b32 s38, s24, 5")
    a("v_add_u32 v2, s38, v2")
    a("v_lshlrev_b32 v2, 10, v2")
    a("v_lshrrev_b32 v3, 5, v1")
    a("v_lshl_add_u32 v2, v3, 3, v2")
    a("s_lshl_b32 s38, s25, 6")
    a("v_add_u32 v2, s38, v2")

    def rnd(dst, src):
        a(f"v_cvt_pk_bf16_f32 v{dst}, v{src}, v{src}")
        a(f"v_lshlrev_b32 v{dst}, 16, v{dst}")

    for q in range(4):
        for r in range(4):
            i = 4 * q + r
            rnd(14, ACA + i)
            a("v_mul_f32 v14, v12, v14")
            rnd(14, 14)
            rnd(15, ACB + i)
            a("v_mul_f32 v15, v13, v15")
            rnd(15, 15)
            a(f"v_add_f32 v{100 + r}, v14, v15")
        a("v_cvt_pk_bf16_f32 v104, v100, v101")
        a("v_cvt_pk_bf16_f32 v105, v102, v103")
        a(f"buffer_store_dwordx2 v[104:105], v2, s[20:23], 0 offen offset:{16 * q}")
        a("s_nop 1")
    a.label("K3_END")
    a("s_endpgm")


KD = """.amdhsa_kernel {name}
  .amdhsa_next_free_vgpr {vgpr}
  .amdhsa_next_free_sgpr 102
  .amdhsa_accum_offset {acc}
  .amdhsa_group_segment_fixed_size 0
  .amdhsa_kernarg_size 80
  .amdhsa_user_sgpr_count 2
  .amdhsa_user_sgpr_kernarg_segment_ptr 1
  .amdhsa_system_sgpr_workgroup_id_x 1
.end_amdhsa_kernel
"""


def main():
    a = Asm()
    hdr = open("gated_mix__softmax_full_mha__dense_activation_relu__prompt.s.ref").read().splitlines()
    for line in hdr:
        if line.startswith("; @launch"):
            break
        a.raw(line)
    a.raw("; @launch kernel=qkv_kernel grid=(256,1,1) block=(256,1,1) lds=94208")
    a.raw("; @launch kernel=attn_kernel grid=(256,1,1) block=(512,1,1) lds=134144")
    a.raw("; @launch kernel=final_kernel grid=(256,1,1) block=(256,1,1) lds=131072")
    a.raw('.amdgcn_target "amdgcn-amd-amdhsa--gfx950"')
    a.raw(".text")
    for k in ("qkv_kernel", "attn_kernel", "final_kernel"):
        a.raw(f".globl {k}")
    gen_k1(a)
    gen_k2(a)
    gen_k3(a)
    a.raw('.section .rodata,"a"')
    for k in ("qkv_kernel", "attn_kernel", "final_kernel"):
        a.raw(".p2align 6")
        a.raw(KD.format(name=k, vgpr=256, acc=256))
    open(OUT, "w").write(a.text())


if __name__ == "__main__":
    main()
```
